```python
import torch

def _softmax(x, axis=-1):
    return torch.softmax(x, dim=axis)
def _gelu(x):
    return torch.nn.functional.gelu(x, approximate="tanh")
def _silu(x):
    return torch.nn.functional.silu(x)
def _sigmoid(x):
    return torch.sigmoid(x)
def _layernorm(x, axis=-1, eps=1e-5):
    m = x.mean(dim=axis, keepdim=True)
    v = x.var(dim=axis, keepdim=True, unbiased=False)
    return (x - m) / torch.sqrt(v + eps)
def _scatter_add(tgt, idx, src, axis=0):
    return tgt.clone().index_add_(axis, idx, src)
def _segment_sum(src, seg, n):
    out = torch.zeros((n,) + src.shape[1:], dtype=src.dtype)
    return out.index_add_(0, seg, src)
def _pad(x, pw):
    flat = tuple(v for pair in reversed(pw) for v in pair)
    return torch.nn.functional.pad(x, flat)

kernel_name = 'gated_mix__linear_attn_block__mixer_token_mlp__prompt'

def setup_inputs():

    _w = (lambda a: (lambda t: t.to(torch.bfloat16) if t.is_floating_point() else t)(torch.as_tensor(a)))
    def _A_setup():
        B, S, D = 1, 2048, 512
        return {
            "x": _w((lambda *s: torch.randn(*s, dtype=torch.bfloat16) * 0.05)(B, S, D)),
            "wqkv": _w((lambda *s: torch.randn(*s, dtype=torch.bfloat16) * 0.4)(D, 3 * D)),
            "wo": _w((lambda *s: torch.randn(*s, dtype=torch.bfloat16) * 0.05)(D, D)),
        }
    _A_in = _A_setup()

    def _B_setup():
        B, S, D, F = 1, 2048, 512, 1376
        return {
            "x": _w((lambda *s: torch.randn(*s, dtype=torch.bfloat16) * 0.05)(B, S, D)),
            "w1": _w((lambda *s: torch.randn(*s, dtype=torch.bfloat16) * 0.4)(S, F) * (S ** -0.5)),
            "b1": _w((lambda *s: torch.randn(*s, dtype=torch.bfloat16) * 3.2)(F) * 0.02),
            "w2": _w((lambda *s: torch.randn(*s, dtype=torch.bfloat16) * 0.05)(F, S) * (F ** -0.5)),
            "b2": _w((lambda *s: torch.randn(*s, dtype=torch.bfloat16) * 0.1)(S) * 0.02),
        }
    _B_in = _B_setup()

    return {
        "A_x": _A_in["x"],
        "A_wqkv": _A_in["wqkv"],
        "A_wo": _A_in["wo"],
        "B_x": _B_in["x"],
        "B_w1": _B_in["w1"],
        "B_b1": _B_in["b1"],
        "B_w2": _B_in["w2"],
        "B_b2": _B_in["b2"],
        "gate_w": _w((lambda *s: torch.randn(*s, dtype=torch.bfloat16) * 0.05)(512) * 16.0),
    }

def reference(A_x, A_wqkv, A_wo, B_x, B_w1, B_b1, B_w2, B_b2, gate_w):
    def _A_ref(x, wqkv, wo):
        B, S, D = x.shape
        H = 32; Dh = D // H
        qkv = (lambda x, *d: x.permute(*d))((x @ wqkv).reshape(B, S, 3, H, Dh), 2, 0, 3, 1, 4)
        q, k, v = qkv[0], qkv[1], qkv[2]
        phi = lambda t: torch.where(t > 0, t + 1, torch.exp(t)) + 1e-6
        pq, pk = phi(q), phi(k)
        kv = torch.einsum("bhsd,bhse->bhde", pk, v)
        z = torch.einsum("bhsd->bhd", pk)
        num = torch.einsum("bhqd,bhde->bhqe", pq, kv)
        den = torch.einsum("bhqd,bhd->bhq", pq, z)[..., None] + 1e-6
        o = num / den
        return (lambda x, *d: x.permute(*d))(o, 0, 2, 1, 3).reshape(B, S, D) @ wo

    def _B_ref(x, w1, b1, w2, b2):
        B, S, D = x.shape
        h = _layernorm(x, axis=-1)
        u = torch.einsum("bsd,sf->bdf", h, w1) + b1
        u = _gelu(u)
        y = torch.einsum("bdf,fs->bds", u, w2) + b2
        return (lambda x, *d: x.permute(*d))(y, 0, 2, 1)

    x = A_x
    g = _sigmoid((x * gate_w).sum(-1, keepdims=True))
    a = _A_ref(x, A_wqkv, A_wo)
    b = _B_ref(x, B_w1, B_b1, B_w2, B_b2)
    return g * a + (1 - g) * b
```

```python
import re

TRANS = ("v_exp_f32", "v_log_f32", "v_rcp_f32", "v_rsq_f32", "v_sqrt_f32", "v_sin_f32", "v_cos_f32")

def _regs(tok):
    tok = tok.strip()
    tok = re.sub(r"^-", "", tok)
    m = re.fullmatch(r"abs\((.*)\)", tok) or re.fullmatch(r"\|(.*)\|", tok)
    if m: tok = m.group(1)
    m = re.fullmatch(r"([vas])\[(\d+):(\d+)\]", tok)
    if m: return [f"{m.group(1)}{i}" for i in range(int(m.group(2)), int(m.group(3)) + 1)]
    m = re.fullmatch(r"([vas])(\d+)", tok)
    if m: return [tok]
    if tok in ("vcc", "exec", "m0", "scc"): return [tok]
    if tok in ("vcc_lo", "vcc_hi"): return ["vcc"]
    if tok in ("exec_lo", "exec_hi"): return ["exec"]
    return []

class Ins:
    def __init__(self, text):
        self.text = text
        t = text.split(";")[0].strip()
        self.label = t.endswith(":")
        self.directive = t.startswith(".")
        self.op = ""
        self.w = []; self.r = []; self.kind = "other"; self.states = 1
        self.dpp = False; self.srcC = []; self.srcAB = []; self.passes = 0; self.store_data = []
        if self.label or self.directive or not t:
            self.states = 0
            return
        parts = t.split(None, 1)
        op = parts[0]; self.op = op
        rest = parts[1] if len(parts) > 1 else ""
        ops = []; depth = 0; cur = ""
        for ch in rest:
            if ch in "[(": depth += 1
            if ch in "])": depth -= 1
            if ch == "," and depth == 0:
                ops.append(cur); cur = ""
            else: cur += ch
        ops.append(cur)
        mods = ""
        if ops:
            last = ops[-1].strip().split(None, 1)
            if last:
                ops[-1] = last[0]; mods = last[1] if len(last) > 1 else ""
        ops = [o.strip() for o in ops if o.strip()]
        self.ops = ops; self.mods = mods
        R = [_regs(o) for o in ops]
        allr = lambda lst: [x for l in lst for x in l]
        if op == "s_nop":
            self.states = int(ops[0], 0) + 1; self.kind = "nop"
        elif op.startswith("v_mfma"):
            self.kind = "mfma"; self.w = R[0]; self.srcAB = R[1] + R[2]; self.srcC = R[3]; self.r = self.srcAB + self.srcC
            self.passes = 8 if "32x32x16" in op else 4
        elif op.startswith("v_"):
            self.kind = "valu"
            base = op.replace("_e32", "").replace("_e64", "").replace("_dpp", "").replace("_sdwa", "")
            self.base = base
            if base in TRANS: self.kind = "trans"
            self.dpp = ("_dpp" in op) or any(k in mods for k in ("quad_perm", "row_shr", "row_shl", "row_ror", "row_mirror", "row_half_mirror", "row_bcast", "row_newbcast"))
            if base.startswith("v_cmp"):
                self.w = R[0]; self.r = allr(R[1:])
                if base.startswith("v_cmpx"): self.w = self.w + ["exec"]
            elif base.startswith("v_permlane") and "swap" in base:
                self.w = R[0] + R[1]; self.r = R[0] + R[1]; self.kind = "valu"; self.permlane = True
            elif base in ("v_add_co_u32", "v_sub_co_u32", "v_addc_co_u32", "v_subb_co_u32", "v_subrev_co_u32"):
                self.w = R[0] + R[1]; self.r = allr(R[2:])
            else:
                self.w = R[0]; self.r = allr(R[1:])
                if base in ("v_fmac_f32", "v_dot2c_f32_bf16", "v_writelane_b32", "v_pk_fmac_f16") or self.dpp:
                    self.r = self.r + R[0]
                if base == "v_cndmask_b32" and len(ops) == 3: self.r.append("vcc")
        elif op.startswith("buffer_") or op.startswith("global_") or op.startswith("flat_"):
            lds = bool(re.search(r"\blds\b", mods)) or "load_lds" in op
            if op in ("buffer_inv", "buffer_wbl2"):
                self.kind = "vmem_misc"
            elif "load" in op and lds:
                self.kind = "dma"; self.r = allr(R) + ["m0"]
            elif "load" in op:
                self.kind = "vload"; self.w = R[0]; self.r = allr(R[1:])
            elif "store" in op:
                self.kind = "vstore"; self.r = allr(R)
                data = R[0] if op.startswith("buffer_") else R[1]
                if "x3" in op or "x4" in op: self.store_data = data
            elif "atomic" in op:
                self.kind = "vstore"; self.r = allr(R)
                if "sc0" in mods: self.w = R[0]
        elif op.startswith("ds_"):
            if "read" in op or "bpermute" in op or "permute" in op or "swizzle" in op or "_rtn" in op:
                self.kind = "dsread"; self.w = R[0]; self.r = allr(R[1:])
            else:
                self.kind = "dswrite"; self.r = allr(R)
        elif op.startswith("s_"):
            self.kind = "salu"
            if op.startswith("s_load") or op.startswith("s_buffer_load") or op in ("s_memtime", "s_memrealtime"):
                self.kind = "smem"; self.w = R[0]; self.r = allr(R[1:])
            elif op.startswith("s_cmp") or op.startswith("s_bitcmp") or op.startswith("s_cbranch") or op in ("s_waitcnt", "s_barrier", "s_branch", "s_endpgm", "s_sleep", "s_setprio"):
                self.r = allr(R)
            else:
                self.w = R[0] if R else []; self.r = allr(R[1:])
                if "saveexec" in op: self.w = self.w + ["exec"]

def need_states(p, c):
    n = 0
    pw = set(p.w);
    isv = lambda k: k in ("valu", "trans")
    cr = set(c.r); cw = set(c.w)
    if isv(p.kind):
        vw = {x for x in pw if x[0] in "va" and x != "vcc"}
        sw = {x for x in pw if x[0] == "s" or x == "vcc"}
        if c.kind == "mfma" and vw & cr: n = max(n, 2)
        if isv(c.kind):
            if c.dpp and vw & cr: n = max(n, 2)
            if getattr(c, "permlane", False) and vw & cr: n = max(n, 2)
            if c.base in ("v_readlane_b32", "v_readfirstlane_b32") and vw & cr: n = max(n, 1)
            if sw & cr:
                n = max(n, 2)
                if c.base in ("v_readlane_b32", "v_writelane_b32"): n = max(n, 4)
            if "exec" in pw: n = max(n, 5 if c.dpp else 4 if c.base.startswith(("v_readlane", "v_readfirstlane", "v_writelane", "v_permlane")) else 2)
        if p.kind == "trans" and (isv(c.kind) or c.kind == "mfma") and vw & cr: n = max(n, 1)
        if c.kind in ("vload", "vstore", "dma") and sw & cr: n = max(n, 5)
        if c.kind == "mfma" and "exec" in pw: n = max(n, 4)
        if c.kind == "salu" and sw & cr: n = max(n, 1)
    if p.kind == "mfma":
        big = p.passes == 8
        if c.kind == "mfma":
            if pw & set(c.srcAB): n = max(n, 12 if big else 8)
            if pw & set(c.srcC):
                if not (c.srcC == p.w and c.passes == p.passes): n = max(n, 10 if big else 6)
            elif pw & cw: n = max(n, 10 if big else 6)
        elif isv(c.kind):
            if pw & (cr | cw): n = max(n, 12 if big else 8)
            if set(p.srcC) & cw: n = max(n, 7 if big else 3)
        elif c.kind in ("vload", "vstore", "dma", "dsread", "dswrite"):
            if pw & (cr | cw): n = max(n, 12 if big else 8)
    if p.kind == "salu" and "m0" in pw and c.kind == "dma": n = max(n, 1)
    if p.kind == "vstore" and p.store_data and (isv(c.kind) or c.kind in ("mfma", "dsread", "vload")) and set(p.store_data) & cw: n = max(n, 2)
    return n

class Asm:
    def __init__(self):
        self.ins = []
        self.vm = []
        self.lg = []
        self.nops_added = 0
    def raw(self, s):
        self.ins.append(Ins(s))
    def __call__(self, s, tag=None):
        for line in s.split("\n"):
            line = line.strip()
            if not line: continue
            i = Ins(line)
            dist = 0; need = 0
            for p in reversed(self.ins):
                if dist >= 20: break
                if p.states == 0: continue
                q = need_states(p, i) - dist
                if q > need: need = q
                dist += p.states
            while need > 0:
                k = min(need, 16)
                self.ins.append(Ins(f"s_nop {k-1}")); need -= k; self.nops_added += 1
            self.ins.append(i)
            if i.kind in ("vload", "vstore", "dma"): self.vm.append(tag)
            if i.kind in ("dsread", "dswrite"): self.lg.append(tag)
            if i.op == "s_waitcnt":
                m = re.search(r"vmcnt\((\d+)\)", line)
                if m:
                    n = int(m.group(1)); self.vm = self.vm[len(self.vm) - n:] if n < len(self.vm) else self.vm
                    if n == 0: self.vm = []
                m = re.search(r"lgkmcnt\((\d+)\)", line)
                if m:
                    n = int(m.group(1)); self.lg = self.lg[len(self.lg) - n:] if n < len(self.lg) else self.lg
                    if n == 0: self.lg = []
    def _cnt(self, lst, tags):
        idx = -1
        for k, t in enumerate(lst):
            if t in tags: idx = k
        return None if idx < 0 else len(lst) - 1 - idx
    def wait(self, vm=(), lg=()):
        if not isinstance(vm, (list, tuple, set)): vm = [vm]
        if not isinstance(lg, (list, tuple, set)): lg = [lg]
        a = self._cnt(self.vm, set(vm)) if vm else None
        b = self._cnt(self.lg, set(lg)) if lg else None
        parts = []
        if a is not None: parts.append(f"vmcnt({min(a, 63)})")
        if b is not None: parts.append(f"lgkmcnt({min(b, 15)})")
        if parts: self("s_waitcnt " + " ".join(parts))
    def text(self):
        out = []
        for i in self.ins:
            out.append(i.text if (i.label or i.directive) else "    " + i.text)
        return "\n".join(out) + "\n"
```

```python
import sys
from asmlib import Asm

NAME = "gated_mix__linear_attn_block__mixer_token_mlp__prompt"
HT_OFF, PQ_OFF, OF_OFF, U_OFF, KVP_OFF, G_OFF = 0, 2 << 20, 4 << 20, 6 << 20, 8 << 20, 10 << 20
LOG2E = 0x3fb8aa3b

def f2u(x):
    import struct
    return struct.unpack("<I", struct.pack("<f", x))[0]

def kernargs(A):
    A("s_load_dwordx16 s[16:31], s[0:1], 0")
    A("s_load_dwordx8 s[32:39], s[0:1], 64")

PTR = dict(x=16, wqkv=18, wo=20, w1=24, b1=26, w2=28, b2=30, gate=32, out=34, dbg=36, ws=38)

def srd(A, d, ptr, size, off=0):
    p = PTR[ptr]
    if off:
        A(f"s_add_u32 s{d}, s{p}, {off}")
        A(f"s_addc_u32 s{d+1}, s{p+1}, 0")
    else:
        A(f"s_mov_b32 s{d}, s{p}")
        A(f"s_mov_b32 s{d+1}, s{p+1}")
    A(f"s_mov_b32 s{d+2}, {size}")
    A(f"s_mov_b32 s{d+3}, 0x20000")

def S(d): return f"s[{d}:{d+3}]"
def V(r, n=4): return f"v[{r}:{r+n-1}]"
def AG(r, n=4): return f"a[{r}:{r+n-1}]"

def header(A, label):
    A.raw(f".globl {label}")
    A.raw(".p2align 8")
    A.raw(f".type {label},@function")
    A.raw(f"{label}:")

def lane_setup(A):
    A("v_lshrrev_b32 v2, 6, v0")
    A("v_and_b32 v1, 63, v0")
    A("v_readfirstlane_b32 s3, v2")

def tr_addr(A, dst, tmp, porder, half_s=None):
    A(f"v_lshrrev_b32 v{dst}, 5, v1")
    A(f"v_lshlrev_b32 v{dst}, {9 if porder else 10}, v{dst}")
    A(f"v_bfe_u32 v{tmp}, v1, 2, 2")
    A(f"v_lshl_add_u32 v{dst}, v{tmp}, 7, v{dst}")
    A(f"v_bfe_u32 v{tmp}, v1, 3, 1")
    A(f"v_lshl_add_u32 v{dst}, v{tmp}, 6, v{dst}")
    A(f"v_bfe_u32 v{tmp}, v1, 4, 1")
    A(f"v_lshl_add_u32 v{dst}, v{tmp}, 5, v{dst}")
    A(f"v_and_b32 v{tmp}, 3, v1")
    A(f"v_lshl_add_u32 v{dst}, v{tmp}, 3, v{dst}")
    if half_s is not None:
        A(f"v_xor_b32 v{dst}, s{half_s}, v{dst}")

def t_dma_voff(A, dst, tmp, stride_s):
    A(f"v_lshrrev_b32 v{dst}, 3, v1")
    A(f"v_mul_lo_u32 v{dst}, v{dst}, s{stride_s}")
    A(f"v_bfe_u32 v{tmp}, v1, 4, 1")
    A(f"v_lshlrev_b32 v{tmp}, 2, v{tmp}")
    A(f"v_xor_b32 v{tmp}, v{tmp}, v1")
    A(f"v_and_b32 v{tmp}, 7, v{tmp}")
    A(f"v_lshl_add_u32 v{dst}, v{tmp}, 4, v{dst}")

def phi(A, regs, t0, cl2e, ceps):
    n = len(regs)
    for i, r in enumerate(regs): A(f"v_mul_f32 v{t0+i}, s{cl2e}, v{r}")
    for i, r in enumerate(regs): A(f"v_min_f32 v{t0+i}, 0, v{t0+i}")
    for i, r in enumerate(regs): A(f"v_exp_f32 v{t0+i}, v{t0+i}")
    for i, r in enumerate(regs): A(f"v_max_f32 v{r}, 0, v{r}")
    for i, r in enumerate(regs): A(f"v_add_f32 v{r}, v{r}, v{t0+i}")
    for i, r in enumerate(regs): A(f"v_add_f32 v{r}, s{ceps}, v{r}")

def k0(A):
    header(A, "p0_kernel")
    A("s_cmp_ge_u32 s2, 256")
    A("s_cbranch_scc1 L_p0_end")
    kernargs(A)
    lane_setup(A)
    A("s_and_b32 s4, s2, 7\ns_lshr_b32 s5, s2, 3")
    A("s_lshr_b32 s6, s4, 1\ns_lshl_b32 s6, s6, 3\ns_and_b32 s7, s5, 7\ns_add_u32 s6, s6, s7")
    A("s_and_b32 s7, s4, 1\ns_lshl_b32 s7, s7, 2\ns_lshr_b32 s8, s5, 3\ns_add_u32 s7, s7, s8")
    A("s_and_b32 s8, s3, 1\ns_lshr_b32 s9, s3, 1")
    A("s_lshl_b32 s10, s6, 6\ns_lshl_b32 s11, s7, 3\ns_add_u32 s10, s10, s11")
    A("s_lshl_b32 s11, s3, 1\ns_add_u32 s11, s11, s10")
    A("v_lshrrev_b32 v3, 5, v1\nv_add_u32 v3, s11, v3")
    A("v_and_b32 v4, 31, v1\nv_lshlrev_b32 v4, 4, v4")
    A("v_lshl_add_u32 v5, v3, 10, v4")
    A("s_waitcnt lgkmcnt(0)")
    SX, SW, SG, SH, SPQ, SKV, SGO = 40, 44, 48, 52, 56, 60, 64
    srd(A, SX, "x", 2048*1024)
    srd(A, SG, "gate", 1024)
    A(f"buffer_load_dwordx4 v[8:11], v5, {S(SX)}, 0 offen", "ln")
    A(f"buffer_load_dwordx4 v[12:15], v5, {S(SX)}, 0 offen offset:512", "ln")
    A(f"buffer_load_dwordx4 v[16:19], v4, {S(SG)}, 0 offen", "ln")
    A(f"buffer_load_dwordx4 v[20:23], v4, {S(SG)}, 0 offen offset:512", "ln")
    srd(A, SW, "wqkv", 512*3072)
    srd(A, SH, "ws", 2 << 20, HT_OFF)
    srd(A, SPQ, "ws", 2 << 20, PQ_OFF)
    srd(A, SKV, "ws", 2 << 20, KVP_OFF)
    srd(A, SGO, "ws", 8192, G_OFF)
    VX0, VX1, VW0, VW1 = 24, 25, 26, 27
    A("s_lshl_b32 s12, s6, 6\ns_lshl_b32 s13, s3, 4\ns_add_u32 s12, s12, s13")
    A(f"v_lshrrev_b32 v{VX0}, 3, v1\nv_add_u32 v{VX0}, s12, v{VX0}\nv_lshlrev_b32 v{VX0}, 10, v{VX0}")
    A("v_lshrrev_b32 v6, 4, v1\nv_xor_b32 v6, v6, v1\nv_and_b32 v6, 7, v6")
    A(f"v_xor_b32 v7, 4, v6")
    A(f"v_lshl_add_u32 v{VX1}, v7, 4, v{VX0}\nv_add_u32 v{VX1}, {8*1024-1024}, v{VX1}")
    A(f"v_lshl_add_u32 v{VX0}, v6, 4, v{VX0}")
    A("s_movk_i32 s14, 3072")
    t_dma_voff(A, VW0, 6, 14)
    A("s_mul_i32 s12, s3, 16*3072\ns_lshl_b32 s13, s7, 7\ns_add_u32 s12, s12, s13")
    A(f"v_add_u32 v{VW0}, s12, v{VW0}")
    A(f"v_add_u32 v{VW1}, {8*3072-1024}, v{VW0}")
    NST = 4
    STG = 32768
    LNS = NST * STG
    A("s_lshl_b32 s15, s3, 11")
    def dma_chunk(c):
        st = (c % NST) * STG
        A(f"s_add_u32 m0, s15, {st}")
        A(f"s_movk_i32 s68, {c*128}")
        A(f"buffer_load_dwordx4 v{VX0}, {S(SX)}, s68 offen lds", f"c{c}")
        A(f"buffer_load_dwordx4 v{VX1}, {S(SX)}, s68 offen offset:1024 lds", f"c{c}")
        for p in range(3):
            A(f"s_add_u32 m0, s15, {st + 8192 + p*8192}")
            A(f"s_mov_b32 s68, {c*64*3072 + p*1024}")
            A(f"buffer_load_dwordx4 v{VW0}, {S(SW)}, s68 offen lds", f"c{c}")
            A(f"buffer_load_dwordx4 v{VW1}, {S(SW)}, s68 offen offset:1024 lds", f"c{c}")
    dma_chunk(0)
    dma_chunk(1)
    RX = 28
    RW = 36
    A("v_and_b32 v6, 31, v1\ns_lshl_b32 s12, s8, 5\nv_add_u32 v6, s12, v6")
    A("v_bfe_u32 v7, v6, 1, 3")
    A(f"v_lshrrev_b32 v{RX}, 5, v1\nv_xor_b32 v7, v7, v{RX}")
    A(f"v_lshlrev_b32 v7, 4, v7\nv_lshl_add_u32 v{RX}, v6, 7, v7")
    for t in range(1, 4): A(f"v_xor_b32 v{RX+t}, {32*t}, v{RX}")
    for t in range(4): A(f"v_add_u32 v{RX+4+t}, 0x10000, v{RX+t}")
    A("s_lshl_b32 s12, s9, 6")
    tr_addr(A, RW, 6, False, 12)
    A(f"v_add_u32 v{RW+1}, 0x10000, v{RW}")
    A.wait(vm="ln")
    SUM, SQ, GD = 40, 41, 42
    A("s_mov_b32 s69, 0x3f803f80")
    A(f"v_mov_b32 v{SUM}, 0\nv_mov_b32 v{SQ}, 0\nv_mov_b32 v{GD}, 0\nv_mov_b32 v43, s69")
    for i in range(8):
        A(f"v_dot2c_f32_bf16 v{SUM}, v{8+i}, v43")
        A(f"v_dot2c_f32_bf16 v{SQ}, v{8+i}, v{8+i}")
        A(f"v_dot2c_f32_bf16 v{GD}, v{8+i}, v{16+i}")
    A("s_nop 3")
    for mod in ("quad_perm:[1,0,3,2]", "quad_perm:[2,3,0,1]", "row_half_mirror", "row_mirror"):
        for r in (SUM, SQ, GD):
            A(f"v_add_f32_dpp v{r}, v{r}, v{r} {mod} row_mask:0xf bank_mask:0xf")
    for i, r in enumerate((SUM, SQ, GD)): A(f"v_mov_b32 v{44+i}, v{r}")
    for i, r in enumerate((SUM, SQ, GD)): A(f"v_permlane16_swap_b32 v{44+i}, v{r}")
    for i, r in enumerate((SUM, SQ, GD)): A(f"v_add_f32 v{r}, v{r}, v{44+i}")
    A(f"v_mul_f32 v{SUM}, {f2u(1/512):#x}, v{SUM}")
    A(f"v_mul_f32 v{SQ}, {f2u(1/512):#x}, v{SQ}")
    A(f"v_fma_f32 v{SQ}, -v{SUM}, v{SUM}, v{SQ}")
    A(f"v_max_f32 v{SQ}, 0, v{SQ}")
    A(f"v_add_f32 v{SQ}, {f2u(1e-5):#x}, v{SQ}")
    A(f"v_rsq_f32 v{SQ}, v{SQ}")
    A(f"v_mul_f32 v{GD}, {f2u(-1.4426950408889634):#x}, v{GD}")
    A(f"v_exp_f32 v{GD}, v{GD}")
    A(f"v_mul_f32 v{SUM}, v{SUM}, v{SQ}")
    A(f"v_add_f32 v{GD}, 1.0, v{GD}")
    A(f"v_rcp_f32 v{GD}, v{GD}")
    for i in range(8):
        A(f"v_lshlrev_b32 v{48+2*i}, 16, v{8+i}")
        A(f"v_and_b32 v{49+2*i}, 0xffff0000, v{8+i}")
    for i in range(16):
        A(f"v_fma_f32 v{48+i}, v{48+i}, v{SQ}, -v{SUM}")
    for i in range(8):
        A(f"v_cvt_pk_bf16_f32 v{8+i}, v{48+2*i}, v{49+2*i}")
    A(f"v_lshrrev_b32 v6, 5, v1\ns_lshl_b32 s12, s3, 1\nv_add_u32 v6, s12, v6\nv_mul_u32_u24 v6, 1088, v6\nv_add_u32 v6, v6, v4")
    A(f"v_add_u32 v6, {LNS}, v6")
    A("ds_write_b128 v6, v[8:11]", "lnw")
    A("ds_write_b128 v6, v[12:15] offset:512", "lnw")
    A("v_lshlrev_b32 v7, 2, v3")
    A("v_cmp_eq_u32 vcc, 0, v4\ns_and_saveexec_b64 s[70:71], vcc")
    A(f"buffer_store_dword v{GD}, v7, {S(SGO)}, 0 offen", "gst")
    A("s_mov_b64 exec, s[70:71]")
    A("v_bfe_u32 v6, v1, 2, 2\nv_mul_u32_u24 v6, 1088, v6")
    A("v_lshrrev_b32 v7, 4, v1\nv_lshl_add_u32 v6, v7, 5, v6\nv_and_b32 v7, 3, v1\nv_lshl_add_u32 v6, v7, 3, v6")
    A(f"s_lshl_b32 s12, s3, 8\ns_add_u32 s12, s12, {LNS}\nv_add_u32 v6, s12, v6")
    A("s_waitcnt lgkmcnt(0)\ns_barrier")
    A("ds_read_b64_tr_b16 v[8:9], v6", "lnr")
    A(f"ds_read_b64_tr_b16 v[10:11], v6 offset:{4*1088}", "lnr")
    A("ds_read_b64_tr_b16 v[12:13], v6 offset:128", "lnr")
    A(f"ds_read_b64_tr_b16 v[14:15], v6 offset:{4*1088+128}", "lnr")
    A("s_lshl_b32 s12, s10, 10\ns_lshl_b32 s13, s3, 11\ns_add_u32 s12, s12, s13")
    A("v_lshlrev_b32 v7, 4, v1")
    A.wait(lg="lnr")
    A(f"buffer_store_dwordx4 v[8:11], v7, {S(SH)}, s12 offen", "hst")
    A(f"buffer_store_dwordx4 v[12:15], v7, {S(SH)}, s12 offen offset:1024", "hst")
    dma_chunk(2)
    dma_chunk(3)
    AQ, AK, AV = 64, 80, 96
    FR = 112
    def reads(c, t, st):
        base = (c % NST) * STG
        hi = base >= 65536
        off = base - (65536 if hi else 0)
        r = FR + 16 * st
        A(f"ds_read_b128 {V(r)}, v{RX + (4 if hi else 0) + t} offset:{off}", f"r{c}_{t}")
        for p in range(3):
            o = off + 8192 + (4*p + t) * 2048
            A(f"ds_read_b64_tr_b16 {V(r+4+4*p, 2)}, v{RW + (1 if hi else 0)} offset:{o}", f"r{c}_{t}")
            A(f"ds_read_b64_tr_b16 {V(r+6+4*p, 2)}, v{RW + (1 if hi else 0)} offset:{o+512}", f"r{c}_{t}")
    first = True
    for c in range(8):
        A.wait(vm=f"c{c}")
        A("s_barrier")
        reads(c, 0, 0)
        if c >= 1 and c + 3 < 8: dma_chunk(c + 3)
        for t in range(4):
            if t < 3: reads(c, t + 1, (t + 1) & 1)
            A.wait(lg=f"r{c}_{t}")
            r = FR + 16 * (t & 1)
            cq, ck, cv = (("0", "0", "0") if first else (V(AQ, 16), V(AK, 16), V(AV, 16)))
            A(f"v_mfma_f32_32x32x16_bf16 {V(AQ,16)}, {V(r+4)}, {V(r)}, {cq}")
            A(f"v_mfma_f32_32x32x16_bf16 {V(AK,16)}, {V(r)}, {V(r+8)}, {ck}")
            A(f"v_mfma_f32_32x32x16_bf16 {V(AV,16)}, {V(r)}, {V(r+12)}, {cv}")
            first = False
    A(f"s_mov_b32 s72, {LOG2E:#x}\ns_mov_b32 s73, {f2u(1e-6):#x}")
    T0 = 144
    phi(A, list(range(AK, AK+16)), T0, 72, 73)
    PK, PV, ONES = 8, 16, 24
    for i in range(8): A(f"v_cvt_pk_bf16_f32 v{PK+i}, v{AK+2*i}, v{AK+2*i+1}")
    for i in range(8): A(f"v_cvt_pk_bf16_f32 v{PV+i}, v{AV+2*i}, v{AV+2*i+1}")
    for i in range(4): A(f"v_mov_b32 v{ONES+i}, s69")
    KV, ZZ = 160, 176
    A(f"v_mfma_f32_32x32x16_bf16 {V(KV,16)}, {V(PK)}, {V(PV)}, 0")
    A(f"v_mfma_f32_32x32x16_bf16 {V(ZZ,16)}, {V(PK)}, {V(ONES)}, 0")
    A(f"v_mfma_f32_32x32x16_bf16 {V(KV,16)}, {V(PK+4)}, {V(PV+4)}, {V(KV,16)}")
    A(f"v_mfma_f32_32x32x16_bf16 {V(ZZ,16)}, {V(PK+4)}, {V(ONES)}, {V(ZZ,16)}")
    phi(A, list(range(AQ, AQ+16)), T0, 72, 73)
    for i in range(8): A(f"v_cvt_pk_bf16_f32 v{28+i}, v{AQ+2*i}, v{AQ+2*i+1}")
    A("s_lshl_b32 s12, s6, 1\ns_add_u32 s12, s12, s8\ns_lshl_b32 s12, s12, 5\ns_lshl_b32 s13, s7, 2\ns_add_u32 s12, s12, s13\ns_lshl_b32 s13, s9, 1\ns_add_u32 s12, s12, s13\ns_lshl_b32 s12, s12, 10")
    A("v_lshlrev_b32 v7, 4, v1")
    A(f"buffer_store_dwordx4 v[28:31], v7, {S(SPQ)}, s12 offen", "pqst")
    A(f"buffer_store_dwordx4 v[32:35], v7, {S(SPQ)}, s12 offen offset:1024", "pqst")
    A("v_and_b32 v6, 16, v1\nv_cmp_eq_u32 vcc, 0, v6")
    for i in range(16):
        if i < 8: A(f"v_cndmask_b32 v{KV+i}, v{ZZ+i}, v{KV+i}, vcc")
        else: A(f"v_cndmask_b32 v{KV+i}, v{KV+i}, v{ZZ+i}, vcc")
    A(f"s_lshl_b32 s12, s9, 12\ns_add_u32 s12, s12, {LNS}\nv_add_u32 v6, s12, v7")
    A("s_cmp_eq_u32 s8, 0\ns_cbranch_scc1 L_p0_rh0")
    for q in range(4): A(f"ds_write_b128 v6, {V(KV+4*q)} offset:{q*1024}")
    A("s_waitcnt lgkmcnt(0)\ns_barrier\ns_endpgm")
    A.raw("L_p0_rh0:")
    A("s_barrier")
    for q in range(4): A(f"ds_read_b128 {V(ZZ+4*q)}, v6 offset:{q*1024}")
    A("s_lshl_b32 s12, s7, 1\ns_add_u32 s12, s12, s9\ns_lshl_b32 s12, s12, 5\ns_add_u32 s12, s12, s6\ns_lshl_b32 s12, s12, 12")
    A("s_waitcnt lgkmcnt(0)")
    for i in range(16): A(f"v_add_f32 v{KV+i}, v{KV+i}, v{ZZ+i}")
    for q in range(4): A(f"buffer_store_dwordx4 {V(KV+4*q)}, v7, {S(SKV)}, s12 offen offset:{q*1024}")
    A.raw("L_p0_end:")
    A("s_endpgm")

class FT:
    def __init__(self, A, name, nsteps, sF, vF, f_soff0, f_step, sT, vT, t_soff0, t_step, ring_s, nslot, slot0, rd, porder, acc, t_is_A, areg0, fr0, first_zero, stmp, tmod="", fmod=""):
        self.__dict__.update(locals())
    def loadT(self, i):
        A = self.A
        slot = (self.slot0 + i) % self.nslot
        A(f"s_add_u32 m0, s{self.ring_s}, {slot*2048}")
        A(f"s_add_u32 s{self.stmp}, s{self.t_soff0}, {i*self.t_step}")
        A(f"buffer_load_dwordx4 v{self.vT}, {S(self.sT)}, s{self.stmp} offen {self.tmod} lds", f"{self.name}T{i}")
        A(f"buffer_load_dwordx4 v{self.vT+1}, {S(self.sT)}, s{self.stmp} offen offset:1024 {self.tmod} lds", f"{self.name}T{i}")
    def loadF(self, i):
        A = self.A
        A(f"s_add_u32 s{self.stmp+1}, s{self.f_soff0}, {i*self.f_step}")
        for j in range(2):
            A(f"buffer_load_dwordx4 {AG(self.areg0 + 8*i + 4*j)}, v{self.vF+j}, {S(self.sF)}, s{self.stmp+1} offen {self.fmod}", f"{self.name}F{i}")
    def readT(self, i):
        A = self.A
        slot = (self.slot0 + i) % self.nslot
        r = self.fr0 + 8 * (i & 1)
        A.wait(vm=f"{self.name}T{i}")
        d = 1024 if self.porder else 512
        for j in range(2):
            A(f"ds_read_b64_tr_b16 {V(r+4*j, 2)}, v{self.rd+j} offset:{slot*2048}", f"{self.name}R{i}")
            A(f"ds_read_b64_tr_b16 {V(r+4*j+2, 2)}, v{self.rd+j} offset:{slot*2048+d}", f"{self.name}R{i}")
    def mma(self, i):
        A = self.A
        r = self.fr0 + 8 * (i & 1)
        A.wait(vm=f"{self.name}F{i}", lg=f"{self.name}R{i}")
        for ti in range(2):
            for fj in range(2):
                acc = V(self.acc(ti, fj), 16)
                t = V(r + 4*ti); f = AG(self.areg0 + 8*i + 4*fj)
                c = "0" if (i == 0 and self.first_zero(ti, fj)) else acc
                a, b = (t, f) if self.t_is_A else (f, t)
                A(f"v_mfma_f32_32x32x16_bf16 {acc}, {a}, {b}, {c}")

def run_steps(A, seq, D):
    n = len(seq)
    for k in range(min(D, n)):
        ft, i = seq[k]; ft.loadT(i); ft.loadF(i)
    seq[0][0].readT(seq[0][1])
    for k in range(n):
        if k + D < n:
            ft, i = seq[k + D]; ft.loadT(i); ft.loadF(i)
        if k + 1 < n:
            ft, i = seq[k + 1]; ft.readT(i)
        ft, i = seq[k]; ft.mma(i)

def k1(A):
    header(A, "p1_kernel")
    A("s_and_b32 s4, s2, 7\ns_lshr_b32 s5, s2, 3")
    A("s_cmp_ge_u32 s5, 30")
    A("s_cbranch_scc1 L_p1_end")
    kernargs(A)
    lane_setup(A)
    A("s_cmp_ge_u32 s5, 22")
    A("s_cbranch_scc1 L_p1_o")
    A("s_mul_i32 s6, s4, 22\ns_add_u32 s6, s6, s5\ns_lshr_b32 s7, s6, 3\ns_and_b32 s6, s6, 7")
    A("s_and_b32 s8, s3, 1\ns_lshr_b32 s9, s3, 1")
    SH, SW, SU, SB = 40, 44, 48, 52
    VF, VT, RD = 4, 6, 8
    A("v_lshrrev_b32 v10, 5, v1\nv_lshlrev_b32 v10, 13, v10\nv_and_b32 v11, 31, v1\nv_lshl_add_u32 v10, v11, 4, v10")
    A("s_lshl_b32 s10, s6, 10\ns_lshl_b32 s11, s8, 9\ns_add_u32 s10, s10, s11")
    A(f"v_add_u32 v{VF}, s10, v10\nv_xor_b32 v{VF+1}, 512, v{VF}")
    A("s_movk_i32 s14, 2752")
    t_dma_voff(A, VT, 11, 14)
    A(f"v_add_u32 v{VT+1}, {8*2752-1024}, v{VT}")
    A("s_lshl_b32 s12, s9, 6")
    tr_addr(A, RD, 11, False, 12)
    NSLOT = 16
    A(f"s_mul_i32 s15, s3, {NSLOT*2048}")
    A(f"v_add_u32 v{RD}, s15, v{RD}\nv_xor_b32 v{RD+1}, 64, v{RD}")
    A(f"s_mul_i32 s56, s3, {64*8192}")
    A(f"s_mul_i32 s57, s3, {512*2752}\ns_lshl_b32 s13, s7, 7\ns_add_u32 s57, s57, s13")
    A("s_waitcnt lgkmcnt(0)")
    srd(A, SH, "ws", 2 << 20, HT_OFF)
    srd(A, SW, "w1", 2048*2752)
    srd(A, SU, "ws", 172*8192, U_OFF)
    srd(A, SB, "b1", 2752)
    ACC = 64
    A("v_lshrrev_b32 v11, 5, v1\nv_lshlrev_b32 v11, 3, v11\ns_lshl_b32 s12, s7, 7\ns_lshl_b32 s13, s9, 6\ns_add_u32 s12, s12, s13\nv_add_u32 v11, s12, v11")
    for a in range(4): A(f"buffer_load_dwordx2 {V(16+2*a,2)}, v11, {S(SB)}, 0 offen offset:{16*a}", "b1")
    ft = FT(A, "u", 32, SH, VF, 56, 2*8192, SW, VT, 57, 16*2752, 15, NSLOT, 0, RD, False,
            lambda ti, fj: ACC + 16*(2*ti + fj), True, 0, 32, lambda ti, fj: True, 58)
    run_steps(A, [(ft, i) for i in range(32)], 4)
    A("s_barrier")
    A("v_lshlrev_b32 v12, 4, v1")
    for sidx in (1, 2, 3):
        A(f"s_xor_b32 s12, s3, {sidx}\ns_mul_i32 s12, s12, 12288\nv_add_u32 v13, s12, v12")
        for q in range(4): A(f"ds_write_b128 v13, {V(ACC+16*sidx+4*q)} offset:{(sidx-1)*4096+q*1024}")
    A("s_mul_i32 s12, s3, 12288\nv_add_u32 v13, s12, v12")
    A.wait(vm="b1")
    for a in range(4):
        for h in range(2):
            A(f"v_lshlrev_b32 v{32+4*a+2*h}, 16, v{16+2*a+h}")
            A(f"v_and_b32 v{33+4*a+2*h}, 0xffff0000, v{16+2*a+h}")
    for i in range(16): A(f"v_add_f32 v{ACC+i}, v{ACC+i}, v{32+i}")
    A("s_waitcnt lgkmcnt(0)\ns_barrier")
    for k in range(12): A(f"ds_read_b128 {V(ACC+16+4*k)}, v13 offset:{k*1024}", f"red{k//4}")
    for s in range(3):
        A.wait(lg=f"red{s}")
        for i in range(16): A(f"v_add_f32 v{ACC+i}, v{ACC+i}, v{ACC+16+16*s+i}")
    c0 = -2 * 0.7978845608028654 * 1.4426950408889634
    A(f"s_mov_b32 s60, {f2u(c0*0.044715):#x}\nv_mov_b32 v14, {f2u(c0):#x}")
    T = 32
    for i in range(16): A(f"v_mul_f32 v{T+i}, v{ACC+i}, v{ACC+i}")
    for i in range(16): A(f"v_fma_f32 v{T+i}, v{T+i}, s60, v14")
    for i in range(16): A(f"v_mul_f32 v{T+i}, v{T+i}, v{ACC+i}")
    for i in range(16): A(f"v_exp_f32 v{T+i}, v{T+i}")
    for i in range(16): A(f"v_add_f32 v{T+i}, 1.0, v{T+i}")
    for i in range(16): A(f"v_rcp_f32 v{T+i}, v{T+i}")
    for i in range(16): A(f"v_mul_f32 v{T+i}, v{T+i}, v{ACC+i}")
    for i in range(8): A(f"v_cvt_pk_bf16_f32 v{16+i}, v{T+2*i}, v{T+2*i+1}")
    A("s_lshl_b32 s12, s7, 16\ns_lshl_b32 s13, s9, 15\ns_add_u32 s12, s12, s13\ns_add_u32 s13, s12, 16384")
    A(f"buffer_store_dwordx4 v[16:19], v{VF}, {S(SU)}, s12 offen")
    A(f"buffer_store_dwordx4 v[20:23], v{VF}, {S(SU)}, s13 offen")
    A("s_endpgm")
    A.raw("L_p1_o:")
    A.vm = []; A.lg = []
    A("s_sub_u32 s5, s5, 22\ns_lshl_b32 s5, s5, 3\ns_add_u32 s5, s5, s4")
    A("s_and_b32 s6, s5, 15\ns_lshr_b32 s7, s5, 4")
    SKV, SPQ, SOF = 40, 44, 48
    A("v_lshlrev_b32 v4, 4, v1")
    A("s_waitcnt lgkmcnt(0)")
    srd(A, SKV, "ws", 2 << 20, KVP_OFF)
    srd(A, SPQ, "ws", 2 << 20, PQ_OFF)
    srd(A, SOF, "ws", 2 << 20, OF_OFF)
    A("s_lshl_b32 s10, s6, 5\ns_lshl_b32 s11, s3, 3\ns_add_u32 s10, s10, s11\ns_lshl_b32 s10, s10, 12")
    P = 64
    for m in range(8):
        A(f"s_add_u32 s12, s10, {m*4096}")
        for q in range(4): A(f"buffer_load_dwordx4 {V(P+16*m+4*q)}, v4, {S(SKV)}, s12 offen offset:{q*1024}", f"kp{m}")
    A("s_lshl_b32 s11, s7, 4\ns_lshl_b32 s12, s3, 2\ns_add_u32 s11, s11, s12\ns_lshl_b32 s11, s11, 5\ns_lshl_b32 s12, s6, 1\ns_add_u32 s11, s11, s12\ns_lshl_b32 s11, s11, 10")
    Q = 192
    for i in range(4):
        A(f"s_add_u32 s12, s11, {i*32768}")
        for h in range(2): A(f"buffer_load_dwordx4 {V(Q+8*i+4*h)}, v4, {S(SPQ)}, s12 offen offset:{h*1024}", f"pq{i}")
    for m in range(1, 8):
        A.wait(vm=[f"kp{m}", "kp0"])
        for i in range(16): A(f"v_add_f32 v{P+i}, v{P+i}, v{P+16*m+i}")
    A("s_lshl_b32 s12, s3, 12\nv_add_u32 v5, s12, v4")
    for q in range(4): A(f"ds_write_b128 v5, {V(P+4*q)} offset:{q*1024}")
    A("s_waitcnt lgkmcnt(0)\ns_barrier")
    for k in range(16): A(f"ds_read_b128 {V(P+4*k)}, v4 offset:{k*1024}")
    A("s_waitcnt lgkmcnt(0)")
    for s in range(1, 4):
        for i in range(16): A(f"v_add_f32 v{P+i}, v{P+i}, v{P+16*s+i}")
    for i in range(8): A(f"v_cvt_pk_bf16_f32 v{8+i}, v{P+2*i}, v{P+2*i+1}")
    A(f"s_mov_b32 s13, {f2u(1e-6):#x}")
    for i in range(4):
        A.wait(vm=f"pq{i}")
        for h in range(2):
            A(f"v_mfma_f32_32x32x16_bf16 {V(P+32*i+16*h,16)}, {V(8+4*h)}, {V(Q+8*i+4*h)}, 0")
    for i in range(4):
        A(f"s_add_u32 s12, s11, {i*32768}")
        for h in range(2):
            D = P + 32*i + 16*h
            num, den = (D, D+8) if h == 0 else (D+8, D)
            A(f"v_add_f32 v{den}, s13, v{den}")
            A(f"v_rcp_f32 v{den}, v{den}")
            for k in range(8): A(f"v_mul_f32 v{num+k}, v{num+k}, v{den}")
            for k in range(4): A(f"v_cvt_pk_bf16_f32 v{Q+8*i+4*h+k}, v{num+2*k}, v{num+2*k+1}")
            A(f"buffer_store_dwordx4 {V(Q+8*i+4*h)}, v4, {S(SOF)}, s12 offen offset:{h*1024}")
    A.raw("L_p1_end:")
    A("s_endpgm")

def k2(A):
    header(A, "p2_kernel")
    A("s_cmp_ge_u32 s2, 256")
    A("s_cbranch_scc1 L_p2_end")
    kernargs(A)
    lane_setup(A)
    A("s_and_b32 s4, s2, 7\ns_lshr_b32 s5, s2, 3")
    A("s_lshl_b32 s6, s4, 2\ns_and_b32 s7, s5, 3\ns_add_u32 s6, s6, s7\ns_lshr_b32 s7, s5, 2")
    SU, SW2, SOF, SWO, SG, SB2, SO = 40, 44, 48, 52, 56, 60, 64
    VFU, VFO, VT2, VTO, RD = 4, 6, 8, 10, 12
    A("v_lshrrev_b32 v14, 5, v1\nv_lshlrev_b32 v14, 13, v14\nv_and_b32 v15, 31, v1\nv_lshl_add_u32 v14, v15, 4, v14")
    A(f"s_lshl_b32 s10, s7, 10\nv_add_u32 v{VFU}, s10, v14\nv_add_u32 v{VFU+1}, 512, v{VFU}")
    A(f"v_lshlrev_b32 v{VFO}, 4, v1\nv_add_u32 v{VFO+1}, 32768, v{VFO}")
    A("s_movk_i32 s14, 4096")
    t_dma_voff(A, VT2, 16, 14)
    A(f"v_add_u32 v{VT2+1}, {8*4096-1024}, v{VT2}")
    A("s_movk_i32 s14, 1024")
    t_dma_voff(A, VTO, 16, 14)
    A(f"v_add_u32 v{VTO+1}, {8*1024-1024}, v{VTO}")
    tr_addr(A, RD, 16, True)
    NSLOT = 16
    A(f"s_mul_i32 s15, s3, {NSLOT*2048}")
    A(f"v_add_u32 v{RD}, s15, v{RD}\nv_xor_b32 v{RD+1}, 64, v{RD}")
    A(f"s_mul_i32 s70, s3, {22*2*8192}")
    A(f"s_mul_i32 s71, s3, {22*16*4096}\ns_lshl_b32 s13, s6, 7\ns_add_u32 s71, s71, s13")
    A("s_lshl_b32 s72, s6, 16\ns_lshl_b32 s13, s3, 13\ns_add_u32 s72, s72, s13")
    A(f"s_mul_i32 s73, s3, {8*16*1024}\ns_lshl_b32 s13, s7, 7\ns_add_u32 s73, s73, s13")
    A("s_lshl_b32 s10, s6, 6\nv_add_u32 v16, s10, v15")
    A("v_lshlrev_b32 v17, 2, v16\nv_lshlrev_b32 v18, 1, v16")
    A("s_waitcnt lgkmcnt(0)")
    srd(A, SU, "ws", 172*8192, U_OFF)
    srd(A, SW2, "w2", 1376*4096)
    srd(A, SOF, "ws", 2 << 20, OF_OFF)
    srd(A, SWO, "wo", 512*1024)
    srd(A, SG, "ws", 8192, G_OFF)
    srd(A, SB2, "b2", 4096)
    srd(A, SO, "out", 2048*1024)
    A(f"buffer_load_dword v20, v17, {S(SG)}, 0 offen", "g")
    A(f"buffer_load_dword v21, v17, {S(SG)}, 0 offen offset:128", "g")
    A(f"buffer_load_ushort v22, v18, {S(SB2)}, 0 offen", "g")
    A(f"buffer_load_ushort v23, v18, {S(SB2)}, 0 offen offset:64", "g")
    AY, AA = 64, 128
    fa = FT(A, "a", 8, SOF, VFO, 72, 1024, SWO, VTO, 73, 16*1024, 15, NSLOT, 0, RD, True,
            lambda ti, fj: AA + 16*(2*ti + fj), True, 0, 32, lambda ti, fj: True, 74)
    fy = FT(A, "y", 22, SU, VFU, 70, 2*8192, SW2, VT2, 71, 16*4096, 15, NSLOT, 8, RD, True,
            lambda ti, fj: AY + 16*(2*fj + ti), False, 64, 32, lambda ti, fj: True, 74)
    run_steps(A, [(fa, i) for i in range(8)] + [(fy, i) for i in range(22)], 4)
    A.wait(vm="g")
    A("v_sub_f32 v24, 1.0, v20\nv_sub_f32 v25, 1.0, v21")
    A("v_lshlrev_b32 v22, 16, v22\nv_lshlrev_b32 v23, 16, v23")
    A("s_cmp_eq_u32 s3, 0\ns_cselect_b32 s12, 1.0, 0")
    A("v_mul_f32 v22, s12, v22\nv_mul_f32 v23, s12, v23")
    A("v_mul_f32 v22, v22, v24\nv_mul_f32 v23, v23, v25")
    for di in range(2):
        for sj in range(2):
            b = 16*(2*di + sj)
            for i in range(16): A(f"v_fma_f32 v{AA+b+i}, v{AA+b+i}, v{20+sj}, v{22+sj}")
    for di in range(2):
        for sj in range(2):
            b = 16*(2*di + sj)
            for i in range(16): A(f"v_fma_f32 v{AA+b+i}, v{AY+b+i}, v{24+sj}, v{AA+b+i}")
    A("s_barrier")
    RS = 272
    A(f"v_mul_u32_u24 v26, {RS}, v15\nv_lshrrev_b32 v27, 5, v1\nv_lshl_add_u32 v26, v27, 4, v26\ns_mul_i32 s12, s3, {64*RS}\nv_add_u32 v26, s12, v26")
    for di in range(2):
        for sj in range(2):
            for a in range(4):
                A(f"ds_write_b128 v26, {V(AA+16*(2*di+sj)+4*a)} offset:{sj*32*RS + di*128 + a*32}")
    A(f"v_lshrrev_b32 v27, 2, v1\ns_lshl_b32 s12, s3, 4\nv_add_u32 v27, s12, v27\nv_mul_u32_u24 v28, {RS}, v27\nv_and_b32 v29, 3, v1\nv_lshl_add_u32 v28, v29, 5, v28")
    A("v_add_u32 v27, s10, v27\nv_lshlrev_b32 v27, 10, v27\nv_lshl_add_u32 v27, v29, 4, v27\ns_lshl_b32 s12, s7, 7")
    A("s_waitcnt lgkmcnt(0)\ns_barrier")
    for s in range(4):
        for hh in range(2):
            for q in range(2):
                A(f"ds_read_b128 {V(AY+16*s+8*hh+4*q)}, v28 offset:{s*64*RS + hh*128 + q*16}", f"rd{s}")
    A.wait(lg=["rd0", "rd1"])
    for i in range(16): A(f"v_add_f32 v{AY+i}, v{AY+i}, v{AY+16+i}")
    A.wait(lg=["rd2", "rd3"])
    for i in range(16): A(f"v_add_f32 v{AY+32+i}, v{AY+32+i}, v{AY+48+i}")
    for i in range(16): A(f"v_add_f32 v{AY+i}, v{AY+i}, v{AY+32+i}")
    for i in range(8): A(f"v_cvt_pk_bf16_f32 v{32+i}, v{AY+2*i}, v{AY+2*i+1}")
    A(f"buffer_store_dwordx4 v[32:35], v27, {S(SO)}, s12 offen")
    A(f"buffer_store_dwordx4 v[36:39], v27, {S(SO)}, s12 offen offset:64")
    A.raw("L_p2_end:")
    A("s_endpgm")

def desc(label, vgpr=512, accum=256):
    return f""".amdhsa_kernel {label}
  .amdhsa_next_free_vgpr {vgpr}
  .amdhsa_next_free_sgpr 102
  .amdhsa_accum_offset {accum}
  .amdhsa_group_segment_fixed_size 0
  .amdhsa_kernarg_size 96
  .amdhsa_user_sgpr_count 2
  .amdhsa_user_sgpr_kernarg_segment_ptr 1
  .amdhsa_system_sgpr_workgroup_id_x 1
  .amdhsa_float_denorm_mode_32 3
.end_amdhsa_kernel
"""

def main(path):
    out = []
    out.append("; @launch kernel=p0_kernel grid=(256,1,1) block=(256,1,1) lds=147456")
    out.append("; @launch kernel=p1_kernel grid=(240,1,1) block=(256,1,1) lds=131072")
    out.append("; @launch kernel=p2_kernel grid=(256,1,1) block=(256,1,1) lds=131072")
    out.append('.amdgcn_target "amdgcn-amd-amdhsa--gfx950"\n.text')
    for k in (k0, k1, k2):
        A = Asm(); k(A); out.append(A.text())
    out.append('.section .rodata,"a"')
    for l in ("p0_kernel", "p1_kernel", "p2_kernel"):
        out.append(".p2align 6"); out.append(desc(l))
    open(path, "w").write("\n".join(out))

if __name__ == "__main__":
    main(sys.argv[1] if len(sys.argv) > 1 else "v1.s")
```
